```python
import torch

def _softmax(x, axis=-1):
    return torch.softmax(x, dim=axis)
def _gelu(x):
    return torch.nn.functional.gelu(x, approximate="tanh")
def _silu(x):
    return torch.nn.functional.silu(x)
def _sigmoid(x):
    return torch.sigmoid(x)
def _layernorm(x, axis=-1, eps=1e-5):
    m = x.mean(dim=axis, keepdim=True)
    v = x.var(dim=axis, keepdim=True, unbiased=False)
    return (x - m) / torch.sqrt(v + eps)
def _scatter_add(tgt, idx, src, axis=0):
    return tgt.clone().index_add_(axis, idx, src)
def _segment_sum(src, seg, n):
    out = torch.zeros((n,) + src.shape[1:], dtype=src.dtype)
    return out.index_add_(0, seg, src)
def _pad(x, pw):
    flat = tuple(v for pair in reversed(pw) for v in pair)
    return torch.nn.functional.pad(x, flat)

kernel_name = 'standalone__glu_gated_swiglu__decode'

def setup_inputs():

    _w = (lambda a: (lambda t: t.to(torch.bfloat16) if t.is_floating_point() else t)(torch.as_tensor(a)))
    B, S, D, F = 1, 1, 1024, 3584
    return {
        "x": _w((lambda *s: torch.randn(*s, dtype=torch.bfloat16) * 0.05)(B, S, D)),
        "w1": _w((lambda *s: torch.randn(*s, dtype=torch.bfloat16) * 0.05)(D, F) * (2.0 / D) ** 0.5),
        "w3": _w((lambda *s: torch.randn(*s, dtype=torch.bfloat16) * 0.05)(D, F) * (2.0 / D) ** 0.5),
        "w2": _w((lambda *s: torch.randn(*s, dtype=torch.bfloat16) * 0.05)(F, D) * (2.0 / F) ** 0.5),
    }

def reference(x, w1, w3, w2):
    gate = torch.einsum("bsd,df->bsf", x, w1)
    up = torch.einsum("bsd,df->bsf", x, w3)
    h = _silu(gate) * up
    out = torch.einsum("bsf,fd->bsd", h, w2)
    return out
```

```python
NAME = "standalone__glu_gated_swiglu__decode"
HDR = """; Kernarg layout for this problem (56 bytes, ptrs only, base s[0:1]):
"""
WB = 1024*3584*2
class Asm:
    def __init__(self):
        self.l = []
    def __call__(self, s):
        for x in s.split("\n"):
            x = x.strip()
            if not x: continue
            self.l.append(x if x.endswith(":") or x.startswith(".") else "    " + x)
    def text(self):
        return "\n".join(self.l) + "\n"
def kstart(a, name):
    a(f".globl {name}\n.p2align 8\n.type {name},@function\n{name}:")
def kdesc(name, vgpr, sgpr=96):
    acc = (vgpr + 3)//4*4
    return f""".p2align 6
.amdhsa_kernel {name}
  .amdhsa_next_free_vgpr {vgpr}
  .amdhsa_next_free_sgpr {sgpr}
  .amdhsa_accum_offset {acc}
  .amdhsa_group_segment_fixed_size 0
  .amdhsa_float_denorm_mode_32 3
  .amdhsa_kernarg_size 56
  .amdhsa_user_sgpr_count 2
  .amdhsa_user_sgpr_kernarg_segment_ptr 1
  .amdhsa_system_sgpr_workgroup_id_x 1
.end_amdhsa_kernel
"""
def srd(a, d, b, n):
    a(f"s_mov_b32 s{d}, s{b}\ns_mov_b32 s{d+1}, s{b+1}\ns_mov_b32 s{d+2}, {n}\ns_mov_b32 s{d+3}, 0x20000")
def swap_reduce(a, regs, kind):
    k = len(regs)//2
    for j in range(k):
        a(f"v_permlane{kind}_swap_b32 v{regs[j]}, v{regs[j+k]}")
    if k < 2: a("s_nop 0")
    for j in range(k):
        a(f"v_add_f32 v{regs[j]}, v{regs[j]}, v{regs[j+k]}")
    return regs[:k]
def silu_h(a, g, u, t, hlo, hhi):
    a(f"""v_cvt_pk_bf16_f32 v{g}, v{g}, v{u}
    v_and_b32 v{u}, 0xffff0000, v{g}
    v_lshlrev_b32 v{g}, 16, v{g}
    v_mul_f32 v{t}, 0xbfb8aa3b, v{g}
    v_exp_f32 v{t}, v{t}
    s_nop 0
    v_add_f32 v{t}, 1.0, v{t}
    v_rcp_f32 v{t}, v{t}
    s_nop 0
    v_mul_f32 v{t}, v{g}, v{t}
    v_cvt_pk_bf16_f32 v{t}, v{t}, v{t}
    v_lshlrev_b32 v{t}, 16, v{t}
    v_mul_f32 v{t}, v{t}, v{u}
    v_cvt_pk_bf16_f32 v{t}, v{t}, v{t}
    v_and_b32 v{hlo}, 0xffff, v{t}
    v_lshlrev_b32 v{hhi}, 16, v{t}""")
```

```python
import sys
from common import *
def producer(a, nt="", store_flags="", exit_label="L_exit"):
    a(f"""s_load_dwordx8 s[4:11], s[0:1], 0
    s_load_dwordx2 s[16:17], s[0:1], 48
    s_and_b32 s3, s2, 7
    s_lshr_b32 s18, s2, 3
    s_mul_i32 s3, s3, 28
    s_add_u32 s18, s18, s3
    s_lshl_b32 s19, s18, 5
    v_lshrrev_b32 v5, 1, v0
    v_lshlrev_b32 v2, 4, v5
    v_mul_u32_u24 v1, 0xe000, v5      ; 8 rows * 7168
    v_and_b32 v6, 1, v0
    v_lshlrev_b32 v6, 4, v6
    v_add3_u32 v1, v1, v6, s19
    s_lshl_b32 s3, s18, 15
    v_lshl_add_u32 v3, v0, 3, s3""")
    for i in range(1, 8):
        a(f"s_mov_b32 s{40+i}, {i*7168}\ns_mov_b32 s{48+i}, {i*4096}")
    a("s_waitcnt lgkmcnt(0)")
    srd(a, 20, 4, 2048)
    a("buffer_load_dwordx4 v[8:11], v2, s[20:23], 0 offen")
    srd(a, 24, 6, WB); srd(a, 28, 8, WB)
    for i in range(8):
        so = f"s{40+i}" if i else "0"
        a(f"buffer_load_dwordx4 v[{48+8*i}:{51+8*i}], v1, s[24:27], {so} offen {nt}")
        a(f"buffer_load_dwordx4 v[{52+8*i}:{55+8*i}], v1, s[28:31], {so} offen {nt}")
    srd(a, 32, 10, WB)
    for f in range(16):
        so = f"s{48+f//2}" if f//2 else "0"
        a(f"buffer_load_dwordx2 v[{112+2*f}:{113+2*f}], v3, s[32:35], {so} offen offset:{(f&1)*2048} {nt}")
    srd(a, 36, 16, 64*14336)
    a("""v_lshrrev_b32 v5, 2, v0
    v_mul_u32_u24 v4, 14336, v5
    v_and_b32 v5, 3, v0
    v_lshlrev_b32 v5, 4, v5
    s_lshl_b32 s3, s18, 6
    v_add3_u32 v4, v4, v5, s3
    v_and_b32 v5, 1, v0
    v_lshlrev_b32 v5, 3, v5
    v_bfe_u32 v6, v0, 2, 3
    v_add_u32 v5, v5, v6
    v_bfe_u32 v6, v0, 5, 1
    v_lshl_add_u32 v5, v5, 1, v6
    v_lshrrev_b32 v6, 6, v0
    v_lshl_add_u32 v5, v5, 2, v6
    v_lshlrev_b32 v5, 2, v5
    v_and_b32 v6, 15, v0
    v_lshlrev_b32 v6, 5, v6""")
    for j in range(16):
        a(f"v_mov_b32 v{28+j}, 0")
    a("s_waitcnt vmcnt(32)")
    for k in range(4):
        a(f"""v_and_b32 v{12+4*k}, 0xffff, v{8+k}
        v_lshlrev_b32 v{13+4*k}, 16, v{8+k}
        v_lshrrev_b32 v{14+4*k}, 16, v{8+k}
        v_and_b32 v{15+4*k}, 0xffff0000, v{8+k}""")
    for i in range(8):
        a(f"s_waitcnt vmcnt({30-2*i})")
        for m in range(2):
            for q in range(4):
                a(f"v_dot2c_f32_bf16 v{28+8*m+2*q}, v{12+2*i}, v{48+8*i+4*m+q}")
                a(f"v_dot2c_f32_bf16 v{29+8*m+2*q}, v{13+2*i}, v{48+8*i+4*m+q}")
    a("s_nop 1")
    r = swap_reduce(a, list(range(28, 44)), 32)
    a("s_nop 0")
    r = swap_reduce(a, r, 16)
    a("""s_nop 0
    v_add_f32_dpp v44, v28, v28 row_ror:8 row_mask:0xf bank_mask:0x3
    v_add_f32_dpp v45, v29, v29 row_ror:8 row_mask:0xf bank_mask:0x3
    v_add_f32_dpp v44, v30, v30 row_ror:8 row_mask:0xf bank_mask:0xc
    v_add_f32_dpp v45, v31, v31 row_ror:8 row_mask:0xf bank_mask:0xc
    s_nop 1
    v_add_f32_dpp v46, v44, v44 row_shl:4 row_mask:0xf bank_mask:0x5
    v_add_f32_dpp v46, v45, v45 row_shr:4 row_mask:0xf bank_mask:0xa
    s_nop 1
    v_add_f32_dpp v46, v46, v46 quad_perm:[2,3,0,1] row_mask:0xf bank_mask:0xf
    ds_write_b32 v5, v46
    v_mov_b32 v40, 0
    v_mov_b32 v41, 0
    v_mov_b32 v42, 0
    v_mov_b32 v43, 0
    s_waitcnt lgkmcnt(0)
    s_barrier
    ds_read_b128 v[28:31], v6
    ds_read_b128 v[32:35], v6 offset:16
    s_waitcnt lgkmcnt(0)
    v_add_f32 v28, v28, v29
    v_add_f32 v30, v30, v31
    v_add_f32 v32, v32, v33
    v_add_f32 v34, v34, v35
    v_add_f32 v28, v28, v30
    v_add_f32 v32, v32, v34""")
    silu_h(a, 28, 32, 33, 36, 37)
    a("s_nop 0")
    for f in range(16):
        a(f"s_waitcnt vmcnt({15-f})")
        for q in range(2):
            a(f"v_dot2c_f32_bf16_dpp v{40+2*q}, v36, v{112+2*f+q} row_newbcast:{f} row_mask:0xf bank_mask:0xf")
            a(f"v_dot2c_f32_bf16_dpp v{41+2*q}, v37, v{112+2*f+q} row_newbcast:{f} row_mask:0xf bank_mask:0xf")
def final_reduce(a, creg):
    a("s_nop 1")
    r = swap_reduce(a, [8, 9, 10, 11], 32)
    a("s_nop 1")
    r = swap_reduce(a, r, 16)
    a(f"""s_nop 1
    v_add_f32_dpp v8, v8, v8 row_ror:8 row_mask:0xf bank_mask:0xf
    s_nop 1
    v_add_f32_dpp v8, v8, v8 row_ror:4 row_mask:0xf bank_mask:0xf
    ds_write_b32 v5, v8
    s_waitcnt lgkmcnt(0)
    s_barrier
    v_cmp_gt_u32 vcc, 16, v0
    s_and_saveexec_b64 s[30:31], vcc
    s_cbranch_execz L_done2
    ds_read_b128 v[8:11], v6
    s_lshl_b32 s3, s{creg}, 5
    v_lshl_add_u32 v7, v0, 1, s3
    s_waitcnt lgkmcnt(0)
    v_add_f32 v8, v8, v9
    v_add_f32 v10, v10, v11
    v_add_f32 v8, v8, v10
    v_cvt_pk_bf16_f32 v8, v8, v8
    buffer_store_short v8, v7, s[24:27], 0 offen
    L_done2:""")
def red_addr(a):
    a("""v_and_b32 v5, 3, v0
    v_lshlrev_b32 v5, 2, v5
    v_bfe_u32 v6, v0, 4, 2
    v_add_u32 v5, v5, v6              ; column = q*4 + 2*b5 + b4
    v_lshrrev_b32 v6, 6, v0
    v_lshl_add_u32 v5, v5, 2, v6
    v_lshlrev_b32 v5, 2, v5
    v_lshlrev_b32 v6, 4, v0""")
def gen(nt=""):
    a = Asm()
    A, B = "glu_a_kernel", NAME + "_kernel"
    a('.amdgcn_target "amdgcn-amd-amdhsa--gfx950"\n.text')
    kstart(a, A)
    a("s_cmp_ge_u32 s2, 224\ns_cbranch_scc1 L_exit")
    producer(a, nt)
    a("s_nop 2\nbuffer_store_dwordx4 v[40:43], v4, s[36:39], 0 offen\nL_exit:\ns_endpgm")
    kstart(a, B)
    a("""s_cmp_ge_u32 s2, 64
    s_cbranch_scc1 L_done2
    s_load_dwordx2 s[4:5], s[0:1], 32
    s_load_dwordx2 s[16:17], s[0:1], 48
    s_mul_i32 s3, s2, 14336
    v_lshlrev_b32 v1, 4, v0
    s_mov_b32 s41, 4096
    s_mov_b32 s42, 8192
    s_mov_b32 s43, 12288""")
    red_addr(a)
    a("""s_waitcnt lgkmcnt(0)
    s_add_u32 s16, s16, s3
    s_addc_u32 s17, s17, 0""")
    srd(a, 20, 16, 14336)
    for k in range(4):
        a(f"buffer_load_dwordx4 v[{8+4*k}:{11+4*k}], v1, s[20:23], {'s%d'%(40+k) if k else 0} offen")
    srd(a, 24, 4, 2048)
    a("""s_waitcnt vmcnt(0)
    v_pk_add_f32 v[8:9], v[8:9], v[12:13]
    v_pk_add_f32 v[10:11], v[10:11], v[14:15]
    v_pk_add_f32 v[16:17], v[16:17], v[20:21]
    v_pk_add_f32 v[18:19], v[18:19], v[22:23]
    v_pk_add_f32 v[8:9], v[8:9], v[16:17]
    v_pk_add_f32 v[10:11], v[10:11], v[18:19]""")
    final_reduce(a, 2)
    a("s_endpgm")
    hdr = HDR + f"; @launch kernel={A} grid=(224,1,1) block=(256,1,1) lds=512\n; @launch kernel={B} grid=(64,1,1) block=(256,1,1) lds=256\n"
    return hdr + a.text() + '.section .rodata,"a"\n' + kdesc(A, 144) + kdesc(B, 32)
if __name__ == "__main__":
    open("v1.s", "w").write(gen())
    open("v1nt.s", "w").write(gen("nt"))
```

```python
import sys
from common import *
def stamp(a, on, idx):
    if on: a(f"s_memrealtime s[{60+2*idx}:{61+2*idx}]")
def stamp_out(a, on, n, wgreg):
    if not on: return
    a("s_waitcnt lgkmcnt(0)")
    a(f"s_getreg_b32 s{60+2*n}, hwreg(HW_REG_XCC_ID)")
    a(f"s_lshl_b32 s3, s{wgreg}, 6\ns_add_u32 s3, s3, 0x800000\nv_mov_b32 v1, s3")
    srd(a, 56, 16, "0x1000000")
    a("v_cmp_eq_u32 vcc, 0, v0\ns_and_saveexec_b64 s[54:55], vcc\ns_cbranch_execz L_nost%d" % n)
    for i in range(n+1):
        a(f"v_mov_b32 v2, s{60+2*i}\nbuffer_store_dword v2, v1, s[56:59], 0 offen offset:{4*i}")
    a("L_nost%d:" % n)
def gen(nt="", st=False):
    a = Asm()
    K = NAME + "_kernel"
    a('.amdgcn_target "amdgcn-amd-amdhsa--gfx950"\n.text')
    kstart(a, K)
    stamp(a, st, 0)
    a(f"""s_load_dwordx8 s[4:11], s[0:1], 0
    s_load_dwordx4 s[12:15], s[0:1], 32
    s_load_dwordx2 s[16:17], s[0:1], 48
    s_cmp_lt_u32 s2, 32
    s_cbranch_scc1 L_cons
    s_cmp_ge_u32 s2, 256
    s_cbranch_scc1 L_exit
    s_and_b32 s3, s2, 7
    s_lshr_b32 s18, s2, 3
    s_mul_i32 s3, s3, 28
    s_add_u32 s18, s18, s3
    s_sub_u32 s18, s18, 4
    s_lshl_b32 s19, s18, 5
    v_lshrrev_b32 v5, 1, v0
    v_lshlrev_b32 v2, 4, v5
    v_mul_u32_u24 v1, 0xe000, v5      ; 8 rows * 7168
    v_and_b32 v6, 1, v0
    v_lshlrev_b32 v6, 4, v6
    v_add3_u32 v1, v1, v6, s19
    s_lshl_b32 s3, s18, 15
    v_lshl_add_u32 v3, v0, 3, s3""")
    for i in range(1, 8):
        a(f"s_mov_b32 s{40+i}, {i*7168}\ns_mov_b32 s{48+i}, {i*4096}")
    a("s_waitcnt lgkmcnt(0)")
    stamp(a, st, 1)
    srd(a, 20, 4, 2048)
    a("buffer_load_dwordx4 v[8:11], v2, s[20:23], 0 offen")
    srd(a, 24, 6, WB); srd(a, 28, 8, WB)
    for i in range(8):
        so = f"s{40+i}" if i else "0"
        a(f"buffer_load_dwordx4 v[{48+8*i}:{51+8*i}], v1, s[24:27], {so} offen {nt}")
        a(f"buffer_load_dwordx4 v[{52+8*i}:{55+8*i}], v1, s[28:31], {so} offen {nt}")
    srd(a, 32, 10, WB)
    for f in range(16):
        so = f"s{48+f//2}" if f//2 else "0"
        a(f"buffer_load_dwordx2 v[{112+2*f}:{113+2*f}], v3, s[32:35], {so} offen offset:{(f&1)*2048} {nt}")
    stamp(a, st, 2)
    srd(a, 36, 16, 32*28672)
    srd(a, 20, 14, 128)
    a("""v_lshrrev_b32 v5, 3, v0
    v_mul_u32_u24 v4, 28672, v5
    v_and_b32 v5, 7, v0
    v_lshlrev_b32 v5, 4, v5
    s_lshl_b32 s3, s18, 7
    v_add3_u32 v4, v4, v5, s3
    v_and_b32 v5, 1, v0
    v_lshlrev_b32 v5, 3, v5
    v_bfe_u32 v6, v0, 2, 3
    v_add_u32 v5, v5, v6
    v_bfe_u32 v6, v0, 5, 1
    v_lshl_add_u32 v5, v5, 1, v6
    v_lshrrev_b32 v6, 6, v0
    v_lshl_add_u32 v5, v5, 2, v6
    v_lshlrev_b32 v5, 2, v5
    v_and_b32 v6, 15, v0
    v_lshlrev_b32 v6, 5, v6
    v_and_b32 v7, 31, v0
    v_lshlrev_b32 v7, 2, v7""")
    for j in range(16):
        a(f"v_mov_b32 v{28+j}, 0")
    a("s_waitcnt vmcnt(32)")
    stamp(a, st, 3)
    for k in range(4):
        a(f"""v_and_b32 v{12+4*k}, 0xffff, v{8+k}
        v_lshlrev_b32 v{13+4*k}, 16, v{8+k}
        v_lshrrev_b32 v{14+4*k}, 16, v{8+k}
        v_and_b32 v{15+4*k}, 0xffff0000, v{8+k}""")
    for i in range(8):
        a(f"s_waitcnt vmcnt({30-2*i})")
        if i == 0: stamp(a, st, 4)
        if i == 7:
            stamp(a, st, 5)
            a("buffer_load_dword v47, v7, s[20:23], 0 offen sc1")
        for m in range(2):
            for q in range(4):
                a(f"v_dot2c_f32_bf16 v{28+8*m+2*q}, v{12+2*i}, v{48+8*i+4*m+q}")
                a(f"v_dot2c_f32_bf16 v{29+8*m+2*q}, v{13+2*i}, v{48+8*i+4*m+q}")
    a("s_nop 1")
    r = swap_reduce(a, list(range(28, 44)), 32)
    a("s_nop 0")
    r = swap_reduce(a, r, 16)
    a("""s_nop 0
    v_add_f32_dpp v44, v28, v28 row_ror:8 row_mask:0xf bank_mask:0x3
    v_add_f32_dpp v45, v29, v29 row_ror:8 row_mask:0xf bank_mask:0x3
    v_add_f32_dpp v44, v30, v30 row_ror:8 row_mask:0xf bank_mask:0xc
    v_add_f32_dpp v45, v31, v31 row_ror:8 row_mask:0xf bank_mask:0xc
    s_nop 1
    v_add_f32_dpp v46, v44, v44 row_shl:4 row_mask:0xf bank_mask:0x5
    v_add_f32_dpp v46, v45, v45 row_shr:4 row_mask:0xf bank_mask:0xa
    s_nop 1
    v_add_f32_dpp v46, v46, v46 quad_perm:[2,3,0,1] row_mask:0xf bank_mask:0xf
    ds_write_b32 v5, v46
    v_mov_b32 v40, 0
    v_mov_b32 v41, 0
    v_mov_b32 v42, 0
    v_mov_b32 v43, 0
    s_waitcnt lgkmcnt(0)
    s_barrier
    ds_read_b128 v[28:31], v6
    ds_read_b128 v[32:35], v6 offset:16
    s_waitcnt lgkmcnt(0)""")
    stamp(a, st, 6)
    a("""v_add_f32 v28, v28, v29
    v_add_f32 v30, v30, v31
    v_add_f32 v32, v32, v33
    v_add_f32 v34, v34, v35
    v_add_f32 v28, v28, v30
    v_add_f32 v32, v32, v34""")
    silu_h(a, 28, 32, 33, 36, 37)
    a("s_nop 0")
    for f in range(16):
        a(f"s_waitcnt vmcnt({16-f})")
        for q in range(2):
            a(f"v_dot2c_f32_bf16_dpp v{40+2*q}, v36, v{112+2*f+q} row_newbcast:{f} row_mask:0xf bank_mask:0xf")
            a(f"v_dot2c_f32_bf16_dpp v{41+2*q}, v37, v{112+2*f+q} row_newbcast:{f} row_mask:0xf bank_mask:0xf")
    stamp(a, st, 7)
    a("""s_mov_b32 s3, 0x20000
    L_flag:
    s_waitcnt vmcnt(0)
    v_cmp_eq_u32 vcc, 0, v47
    s_cbranch_vccz L_go
    buffer_load_dword v47, v7, s[20:23], 0 offen sc1
    s_sub_u32 s3, s3, 1
    s_cbranch_scc0 L_flag
    L_go:
    s_nop 0
    v_min_u32 v40, -2, v40
    v_min_u32 v41, -2, v41
    v_min_u32 v42, -2, v42
    v_min_u32 v43, -2, v43
    buffer_store_dwordx4 v[40:43], v4, s[36:39], 0 offen sc1""")
    stamp(a, st, 8)
    if st: a("s_waitcnt vmcnt(0)")
    stamp(a, st, 9)
    stamp_out(a, st, 10, 2)
    a("L_exit:\ns_endpgm")
    a("""L_cons:
    s_mul_i32 s3, s2, 28672
    v_lshlrev_b32 v1, 4, v0
    v_mov_b32 v8, -1
    v_mov_b32 v9, -1
    v_mov_b32 v10, -1
    v_mov_b32 v11, -1""")
    for k in range(1, 7): a(f"s_mov_b32 s{40+k}, {4096*k}")
    a("""s_waitcnt lgkmcnt(0)
    s_add_u32 s18, s16, s3
    s_addc_u32 s19, s17, 0""")
    stamp(a, st, 1)
    srd(a, 20, 18, 28672)
    for k in range(7):
        a(f"buffer_store_dwordx4 v[8:11], v1, s[20:23], {'s%d'%(40+k) if k else 0} offen sc1")
    srd(a, 24, 12, 2048)
    srd(a, 28, 14, 128)
    a("""v_and_b32 v5, 7, v0
    v_lshlrev_b32 v5, 2, v5
    v_bfe_u32 v6, v0, 4, 2
    v_add_u32 v5, v5, v6
    v_lshrrev_b32 v6, 6, v0
    v_lshl_add_u32 v5, v5, 2, v6
    v_lshlrev_b32 v5, 2, v5
    v_lshlrev_b32 v6, 4, v0
    s_lshl_b32 s3, s2, 2
    v_lshlrev_b32 v7, 16, v0
    v_add_u32 v7, s3, v7
    v_mov_b32 v2, 1
    s_waitcnt vmcnt(0)
    s_barrier""")
    stamp(a, st, 2)
    a("""buffer_store_dword v2, v7, s[28:31], 0 offen sc1
    s_mov_b32 s33, 0x20000
    L_pa:
    s_sub_u32 s33, s33, 1
    s_cbranch_scc1 L_done2
    s_sleep 2
    buffer_load_dwordx4 v[8:11], v1, s[20:23], 0 offen sc1
    s_waitcnt vmcnt(0)
    v_cmp_ne_u32 vcc, -1, v8
    s_cbranch_vccz L_pa""")
    stamp(a, st, 3)
    a("L_pb:\ns_sub_u32 s33, s33, 1\ns_cbranch_scc1 L_done2")
    for k in range(7):
        a(f"buffer_load_dwordx4 v[{8+4*k}:{11+4*k}], v1, s[20:23], {'s%d'%(40+k) if k else 0} offen sc1")
    a("s_waitcnt vmcnt(6)\nv_max3_u32 v2, v8, v9, v10\nv_max_u32 v2, v2, v11")
    for k in range(1, 7):
        a(f"s_waitcnt vmcnt({6-k})\nv_max3_u32 v2, v2, v{8+4*k}, v{9+4*k}\nv_max3_u32 v2, v2, v{10+4*k}, v{11+4*k}")
    a("v_cmp_eq_u32 vcc, -1, v2\ns_cbranch_vccnz L_pb")
    stamp(a, st, 4)
    for (d, s) in [(8,12),(16,20),(24,28),(8,16),(24,32),(8,24)]:
        a(f"v_pk_add_f32 v[{d}:{d+1}], v[{d}:{d+1}], v[{s}:{s+1}]\nv_pk_add_f32 v[{d+2}:{d+3}], v[{d+2}:{d+3}], v[{s+2}:{s+3}]")
    a("s_nop 1")
    r = swap_reduce(a, [8, 9, 10, 11], 32)
    a("s_nop 1")
    r = swap_reduce(a, r, 16)
    a(f"""s_nop 1
    v_add_f32_dpp v8, v8, v8 row_ror:8 row_mask:0xf bank_mask:0xf
    ds_write_b32 v5, v8
    s_lshl_b32 s3, s2, 6
    v_lshl_add_u32 v7, v0, 1, s3
    s_waitcnt lgkmcnt(0)
    s_barrier
    v_cmp_gt_u32 vcc, 32, v0
    s_and_saveexec_b64 s[34:35], vcc
    s_cbranch_execz L_done2
    ds_read_b128 v[8:11], v6
    s_waitcnt lgkmcnt(0)
    v_add_f32 v8, v8, v9
    v_add_f32 v10, v10, v11
    v_add_f32 v8, v8, v10
    v_cvt_pk_bf16_f32 v8, v8, v8
    buffer_store_short v8, v7, s[24:27], 0 offen""")
    stamp(a, st, 5)
    if st: a("s_waitcnt vmcnt(0)")
    stamp(a, st, 6)
    stamp_out(a, st, 7, 2)
    a("L_done2:\ns_endpgm")
    hdr = HDR + f"; @launch grid=(256,1,1) block=(256,1,1) lds=512\n"
    return hdr + a.text() + '.section .rodata,"a"\n' + kdesc(K, 144)
if __name__ == "__main__":
    open("v2.s", "w").write(gen())
    open("v2nt.s", "w").write(gen("nt"))
    open("v2st.s", "w").write(gen("", True))
```

```python
import sys
from common import *
H1 = 0x10000
H2 = 0x90000
WSN = 0x110000
C1, C2 = 0x7f4a7c15, 0x9e3779b9
def gen(st=False, nt="nt", slp=8, cslp=2, bar1=True, diag=None, helper=True, KP=2, KC=1, omod="", pa=True, local=True, touch=False, NL=16):
    a = Asm()
    if diag: st = True
    def stamp(i):
        if st: a(f"s_memrealtime s[{60+2*i}:{61+2*i}]")
    def stamp_out(idx, role, tid=None):
        if not st: return
        if diag:
            if diag[0] == role:
                a(f"""s_waitcnt lgkmcnt(0)
                s_sub_u32 s3, s{60+2*diag[1]}, s60
                s_mul_i32 s3, s3, {diag[2]}
                s_add_u32 s3, s3, 2000
                s_min_u32 s3, s3, 20000
                L_spin:
                s_memrealtime s[62:63]
                s_waitcnt lgkmcnt(0)
                s_sub_u32 s62, s62, s60
                s_cmp_lt_u32 s62, s3
                s_cbranch_scc1 L_spin""")
            return
        a(f"s_waitcnt lgkmcnt(0)\ns_lshl_b32 s3, s2, 6\ns_add_u32 s3, s3, 0x800000\nv_mov_b32 v1, s3")
        srd(a, 92, 16, "0x1000000")
        if tid is None: a("s_mov_b64 exec, 1")
        else: a(f"v_cmp_eq_u32 vcc, {tid}, v0\ns_and_saveexec_b64 s[96:97], vcc\ns_cbranch_execz L_nost{role}")
        for i in idx:
            a(f"v_mov_b32 v2, s{60+2*i}\nbuffer_store_dword v2, v1, s[92:95], 0 offen offset:{4*i}")
        a(f"L_nost{role}:")
    def srdc(l):
        for d, n in l: a(f"s_mov_b32 s{d+2}, {n}\ns_mov_b32 s{d+3}, 0x20000")
    K = NAME + "_kernel"
    a('.amdgcn_target "amdgcn-amd-amdhsa--gfx950"\n.text')
    kstart(a, K)
    stamp(0)
    a(f"""s_load_dwordx8 s[4:11], s[0:1], 0
    s_load_dwordx4 s[12:15], s[0:1], 32
    s_load_dwordx2 s[16:17], s[0:1], 48
    v_lshrrev_b32 v5, 6, v0
    s_and_b32 s3, s2, 7
    s_lshr_b32 s18, s2, 3             ; y 0..31
    v_readfirstlane_b32 s33, v5
    s_cmp_ge_u32 s2, 256
    s_cbranch_scc1 L_exit
    s_and_b32 s34, s18, 3             ; j: k split
    s_lshr_b32 s19, s18, 2
    s_mul_i32 s24, s3, 7
    s_add_u32 s19, s19, s24
    s_sub_u32 s19, s19, 1
    s_cmp_ge_u32 s33, 4
    s_cbranch_scc1 L_hi
    s_and_b32 s55, s19, 7
    s_cmp_eq_u32 s55, {3 if helper else 9}
    s_cselect_b32 s55, 1, 0
    s_cselect_b32 s57, 0, {WB}
    s_mov_b32 s26, {WB}
    s_cmp_ge_u32 s18, 4
    s_cbranch_scc1 L_main
    s_cmp_eq_u32 s3, 4
    s_cbranch_scc1 L_exit""")
    if not helper: a("s_endpgm")
    a(f"""s_lshl_b32 s19, s3, 3
    s_cmp_gt_u32 s3, 4
    s_cselect_b32 s24, -5, 3
    s_add_u32 s19, s19, s24           ; helper: the group of this x with g%8==3, rows 4..7 of every 8
    s_mov_b32 s26, 0
    s_mov_b32 s57, {WB}
    L_main:
    s_mul_i32 s24, s34, {256*7168}
    s_lshl_b32 s56, s19, 7
    s_add_u32 s24, s24, s56
    v_lshrrev_b32 v5, 3, v0
    v_mul_u32_u24 v1, 0xe000, v5
    v_and_b32 v6, 7, v0
    v_lshlrev_b32 v6, 4, v6
    v_add3_u32 v1, v1, v6, s24
    s_lshl_b32 s24, s34, 9
    v_lshl_add_u32 v2, v5, 4, s24
    v_mov_b32 v4, 2048
    v_mov_b32 v28, 0
    ds_write_b32 v4, v28
    s_mov_b32 s30, s26
    s_mov_b32 s27, 0x20000
    s_mov_b32 s31, 0x20000""")
    for i in range(1, 8): a(f"s_movk_i32 s{40+i}, {i*7168}" if i*7168 < 32768 else f"s_mov_b32 s{40+i}, {i*7168}")
    srdc(((20, 2048),))
    a("s_waitcnt lgkmcnt(0)")
    stamp(1)
    a("s_mov_b64 s[20:21], s[4:5]\ns_mov_b64 s[24:25], s[6:7]\ns_mov_b64 s[28:29], s[8:9]")
    if not bar1: a("s_setprio 3")
    a("buffer_load_dwordx4 v[8:11], v2, s[20:23], 0 offen")
    for i in range(8):
        so = f"s{40+i}" if i else "0"
        if i == 4: a("s_mov_b32 s26, s57\ns_mov_b32 s30, s57")
        a(f"buffer_load_dwordx4 v[{48+8*i}:{51+8*i}], v1, s[24:27], {so} offen {nt}")
        a(f"buffer_load_dwordx4 v[{52+8*i}:{55+8*i}], v1, s[28:31], {so} offen {nt}")
    a(f"""s_load_dwordx2 s[58:59], s[16:17], s56
    s_mov_b64 s[20:21], s[16:17]
    s_mov_b32 s22, {WSN}
    s_lshl_b32 s54, s3, 16
    s_add_u32 s54, s54, {H1+512}
    s_lshl_b32 s50, s18, 11
    s_add_u32 s50, s50, s54
    v_and_b32 v6, 63, v0
    v_and_b32 v7, 32, v0
    v_add_u32 v7, v7, v6
    v_lshlrev_b32 v3, 4, v7""")
    if touch: a("buffer_load_dword v47, v3, s[20:23], s50 offen")
    stamp(2)
    a(f"""s_barrier
    s_mov_b32 s35, 0x20000
    s_add_u32 s49, s54, 4096
    s_xor_b32 s51, s50, 0x800
    s_xor_b32 s52, s50, 0x1000
    s_xor_b32 s53, s50, 0x1800
    s_xor_b32 s40, s50, 0x200
    v_lshlrev_b32 v1, 1, v6
    v_lshlrev_b32 v2, 5, v6
    v_and_b32 v5, 7, v0
    v_bfe_u32 v6, v0, 3, 3
    v_lshl_add_u32 v5, v5, 3, v6      ; column = 8*(l&7) + ((l>>3)&7)
    s_lshl_b32 s24, s33, 3
    v_lshl_add_u32 v5, v5, 5, s24
    v_mov_b32 v46, 1
    v_mov_b32 v116, 0
    v_mov_b32 v117, 0
    s_waitcnt lgkmcnt(0)
    s_add_u32 s58, s58, {C1}
    s_add_u32 s59, s59, {C2}
    v_mov_b32 v114, s58
    v_mov_b32 v115, s59""")
    for j in range(1, 16): a(f"v_mov_b32 v{28+j}, 0")
    a(f"s_waitcnt vmcnt({16+touch})")
    for k in range(4):
        a(f"""v_and_b32 v{12+4*k}, 0xffff, v{8+k}
        v_lshlrev_b32 v{13+4*k}, 16, v{8+k}
        v_lshrrev_b32 v{14+4*k}, 16, v{8+k}
        v_and_b32 v{15+4*k}, 0xffff0000, v{8+k}""")
    for i in range(8):
        for m in range(2):
            a(f"s_waitcnt vmcnt({15-2*i-m+touch})")
            if i == 0 and m == 0: stamp(3)
            if i == 7 and m == 1: stamp(4)
            for q in range(4):
                a(f"v_dot2c_f32_bf16 v{28+8*m+2*q}, v{12+2*i}, v{48+8*i+4*m+q}")
                a(f"v_dot2c_f32_bf16 v{29+8*m+2*q}, v{13+2*i}, v{48+8*i+4*m+q}")
    swap_reduce(a, [28,29,30,31,36,37,38,39, 32,33,34,35,40,41,42,43], 32)
    swap_reduce(a, [28,29,36,37, 30,31,38,39], 16)
    a("""s_nop 0
    v_add_f32_dpp v44, v28, v28 row_ror:8 row_mask:0xf bank_mask:0x3
    v_add_f32_dpp v44, v29, v29 row_ror:8 row_mask:0xf bank_mask:0xc
    v_add_f32_dpp v45, v36, v36 row_ror:8 row_mask:0xf bank_mask:0x3
    v_add_f32_dpp v45, v37, v37 row_ror:8 row_mask:0xf bank_mask:0xc
    ds_write_b64 v5, v[44:45]
    s_mov_b64 exec, 1
    ds_add_rtn_u32 v46, v4, v46
    s_mov_b64 exec, -1
    ds_read_b128 v[28:31], v2
    ds_read_b128 v[32:35], v2 offset:16
    s_waitcnt lgkmcnt(2)
    v_readfirstlane_b32 s24, v46
    s_cmp_lg_u32 s24, 3
    s_cbranch_scc1 L_exit
    s_cmp_lt_u32 s18, 4
    s_waitcnt lgkmcnt(0)
    v_pk_add_f32 v[28:29], v[28:29], v[30:31]
    v_pk_add_f32 v[32:33], v[32:33], v[34:35]
    v_pk_add_f32 v[112:113], v[28:29], v[32:33]
    """)
    if local: a("buffer_store_dwordx4 v[112:115], v3, s[20:23], s50 offen")
    else: a("buffer_store_dwordx4 v[112:115], v3, s[20:23], s50 offen sc1")
    a("s_cbranch_scc1 " + ("L_pub" if local else "L_exit"))
    def fallback(regs):
        if not local: return
        a(f"s_cmp_eq_u32 s35, {0x20000-NL}\ns_cselect_b32 s24, 0x200, 0")
        for r in regs: a(f"s_xor_b32 s{r}, s{r}, s24")
    stamp(5)
    a("s_cmp_eq_u32 s55, 0\ns_cbranch_scc1 L_nh\nL_hp:")
    for i in range(4): a(f"buffer_load_dwordx4 v[{8+4*i}:{11+4*i}], v3, s[20:23], {'s54' if i<2 else 's49'} offen offset:{2048*(i&1)} sc1")
    fallback((54, 49))
    a("s_sub_u32 s35, s35, 1\ns_cbranch_scc1 L_exit\ns_waitcnt vmcnt(0)")
    for i in range(4): a(f"v_cmpx_eq_u64 vcc, s[58:59], v[{10+4*i}:{11+4*i}]")
    a("""s_cmp_eq_u64 vcc, -1
    s_mov_b64 exec, -1
    s_cbranch_scc0 L_hp
    v_pk_add_f32 v[8:9], v[8:9], v[12:13]
    v_pk_add_f32 v[16:17], v[16:17], v[20:21]
    v_pk_add_f32 v[116:117], v[8:9], v[16:17]
    s_mov_b32 s35, 0x20000
    L_nh:""")
    def iss(k):
        for i in range(3): a(f"buffer_load_dwordx4 v[{48+12*k+4*i}:{51+12*k+4*i}], v3, s[20:23], s{51+i} offen sc1")
    for k in range(KP):
        iss(k)
        if k < KP-1: a(f"s_sleep {slp}")
    a("L_loop:")
    for k in range(KP):
        a(f"s_waitcnt vmcnt({3*(KP-1)})")
        for i in range(3): a(f"v_cmpx_eq_u64 vcc, s[58:59], v[{50+12*k+4*i}:{51+12*k+4*i}]")
        a(f"s_cmp_eq_u64 vcc, -1\ns_mov_b64 exec, -1\ns_cbranch_scc1 L_ok{k}")
        iss(k)
    if local:
        a(f"""s_cmp_lg_u32 s35, {0x20000-NL}
        s_cbranch_scc1 L_nofb
        buffer_store_dwordx4 v[112:115], v3, s[20:23], s40 offen sc1
        s_xor_b32 s51, s51, 0x200
        s_xor_b32 s52, s52, 0x200
        s_xor_b32 s53, s53, 0x200
        s_waitcnt vmcnt(0)
        L_nofb:""")
    a("s_sub_u32 s35, s35, 1\ns_cbranch_scc0 L_loop\ns_endpgm")
    for k in range(KP):
        b = 48+12*k
        a(f"L_ok{k}:\nv_pk_add_f32 v[28:29], v[112:113], v[{b}:{b+1}]\nv_pk_add_f32 v[30:31], v[{b+4}:{b+5}], v[{b+8}:{b+9}]")
        if st: a(f"s_mov_b32 s48, {k}")
        if k < KP-1: a("s_branch L_h")
    a("L_h:")
    stamp(7)
    a("v_pk_add_f32 v[28:29], v[28:29], v[30:31]\nv_pk_add_f32 v[28:29], v[28:29], v[116:117]")
    silu_h(a, 28, 29, 30, 36, 37); a.l = a.l[:-2]
    a("ds_write_b16 v1, v30 offset:2112\ns_waitcnt lgkmcnt(0)\ns_barrier")
    stamp(8)
    a("s_cmp_lg_u32 s34, 0\ns_cbranch_scc1 L_nor\ns_mov_b64 exec, 1\nbuffer_store_dwordx2 v[114:115], off, s[20:23], s56\ns_mov_b64 exec, -1\nL_nor:")
    if local: a("L_pub:\nbuffer_store_dwordx4 v[112:115], v3, s[20:23], s40 offen sc1")
    if st: a("s_cmp_lt_u32 s18, 4\ns_cbranch_scc1 L_exit")
    if st: a(f's_sub_u32 s84, 0x20000, s35\ns_mul_i32 s84, s84, {KP}\ns_add_u32 s84, s84, s48\ns_mul_i32 s84, s84, 100\ns_add_u32 s84, s84, s60')
    stamp_out([0,1,2,3,4,5,7,8,12], "p")
    a("L_exit:\ns_endpgm")
    a(f"""L_hi:
    s_sub_u32 s33, s33, 4
    s_cmp_lt_u32 s18, 4
    s_cbranch_scc1 L_cons
    s_lshl_b32 s24, s19, 17
    s_lshl_b32 s25, s34, 9
    s_add_u32 s24, s24, s25
    s_lshl_b32 s25, s33, 7
    s_add_u32 s24, s24, s25
    v_bfe_u32 v5, v0, 3, 3
    v_lshlrev_b32 v7, 14, v5
    v_lshlrev_b32 v6, 4, v5
    v_and_b32 v5, 7, v0
    v_lshlrev_b32 v5, 4, v5
    v_add3_u32 v3, v7, v5, s24
    v_bfe_u32 v5, v0, 1, 2
    v_lshlrev_b32 v2, 7, v5
    v_lshlrev_b32 v4, 13, v5
    v_and_b32 v5, 1, v0
    v_lshl_add_u32 v4, v5, 6, v4
    v_bfe_u32 v5, v0, 4, 2
    v_lshl_add_u32 v4, v5, 4, v4
    s_lshl_b32 s24, s34, 2
    s_add_u32 s24, s24, s33
    s_lshl_b32 s55, s24, 9
    s_add_u32 s55, s55, 0x2000
    s_lshl_b32 s24, s24, 15
    s_lshl_b32 s25, s3, 10
    s_add_u32 s24, s24, s25
    s_lshr_b32 s25, s18, 2
    s_cmp_lt_u32 s25, 4
    s_subb_u32 s25, s25, 0
    s_lshl_b32 s25, s25, 7
    s_add_u32 s24, s24, s25
    s_add_u32 s54, s24, {H2}
    s_mov_b32 s50, 0x05040100
    s_mov_b32 s51, 0x07060302
    """)
    ACC = (40, 41, 44, 45, 46, 47, 48, 49)
    for r in ACC: a(f"v_mov_b32 v{r}, 0")
    for i in range(1, 4): a(f"s_movk_i32 s{40+i}, {i*4096}")
    srdc(((24, WB), (28, WSN)))
    a("s_waitcnt lgkmcnt(0)\ns_mov_b64 s[24:25], s[10:11]\ns_mov_b64 s[28:29], s[16:17]\nbuffer_load_dwordx2 v[42:43], v2, s[28:31], s55 offen")
    if bar1: a('s_barrier')
    for f in range(8):
        so = f"s{40+f//2}" if f//2 else "0"
        a(f"buffer_load_dwordx4 v[{64+4*f}:{67+4*f}], v3, s[24:27], {so} offen offset:{(f&1)*2048} {nt}")
    if not bar1: a("s_barrier")
    stamp(6)
    for k in range(4):
        a(f"s_waitcnt vmcnt({6-2*k})")
        for q in range(4):
            a(f"v_perm_b32 v{8+8*k+2*q}, v{68+8*k+q}, v{64+8*k+q}, s50\nv_perm_b32 v{9+8*k+2*q}, v{68+8*k+q}, v{64+8*k+q}, s51")
    a(f"v_add_u32 v42, {C1}, v42\nv_add_u32 v43, {C2}, v43")
    stamp(11)
    a("s_barrier\nds_read_b128 v[56:59], v6 offset:2112\ns_waitcnt lgkmcnt(0)")
    for k in range(4):
        for c in (0, 4, 1, 5, 2, 6, 3, 7):
            a(f"v_dot2c_f32_bf16 v{ACC[c]}, v{56+k}, v{8+8*k+c}")
    swap_reduce(a, list(ACC), 32)
    a("s_nop 0")
    swap_reduce(a, [40, 41, 44, 45], 16)
    a("""s_nop 0
    v_add_f32_dpp v40, v40, v40 row_ror:8 row_mask:0xf bank_mask:0xf
    v_add_f32_dpp v41, v41, v41 row_ror:8 row_mask:0xf bank_mask:0xf
    s_mov_b32 exec_lo, 0x00ff00ff
    s_mov_b32 exec_hi, 0x00ff00ff
    buffer_store_dwordx4 v[40:43], v4, s[28:31], s54 offen sc1""")
    stamp(9)
    if st: a("s_waitcnt vmcnt(0)")
    stamp(10)
    stamp_out([6,9,10,11], "w", 256)
    a("s_endpgm")
    a(f"""L_cons:
    s_cmp_ge_u32 s33, 2
    s_cbranch_scc1 L_done2
    s_barrier
    s_lshl_b32 s24, s2, 1
    s_add_u32 s24, s24, s33
    s_lshl_b32 s56, s24, 7
    s_add_u32 s56, s56, 0x2000
    s_lshl_b32 s41, s24, 13
    s_add_u32 s41, s41, {H2}
    s_add_u32 s42, s41, 4096
    s_waitcnt lgkmcnt(0)
    s_load_dwordx2 s[58:59], s[16:17], s56
    v_and_b32 v5, 63, v0
    v_lshlrev_b32 v3, 4, v5
    v_and_b32 v4, 7, v0
    v_bfe_u32 v6, v0, 5, 1
    v_lshl_add_u32 v4, v4, 1, v6      ; column = 2*(l&7) + b5
    s_lshl_b32 s24, s24, 5
    v_lshl_add_u32 v4, v4, 1, s24
    s_mov_b64 s[20:21], s[16:17]
    s_mov_b64 s[36:37], s[12:13]
    s_mov_b32 s44, 0x00ffffff
    s_mov_b32 s45, -1
    s_mov_b32 s35, 0x40000""")
    srdc(((20, WSN), (36, 2048)))
    for k in range(KC):
        for i in range(8): a(f"v_mov_b32 v{8+32*k+4*i}, 0\nv_mov_b32 v{9+32*k+4*i}, 0")
    a(f"""s_waitcnt lgkmcnt(0)
    s_add_u32 s58, s58, {C1}
    s_add_u32 s59, s59, {C2}
    v_mov_b32 v6, s58
    v_mov_b32 v7, s59
    s_mov_b64 exec, s[44:45]""")
    stamp(1); stamp(2)
    if pa: a(f"""L_pa:
    s_sub_u32 s35, s35, 1
    s_cbranch_scc1 L_done2
    s_sleep 2
    buffer_load_dwordx4 v[8:11], v3, s[20:23], s41 offen sc1
    s_waitcnt vmcnt(0)
    v_cmp_eq_u64 vcc, s[58:59], v[10:11]
    s_cbranch_vccz L_pa""")
    stamp(3)
    def ciss(k):
        for i in range(8): a(f"buffer_load_dwordx4 v[{8+32*k+4*i}:{11+32*k+4*i}], v3, s[20:23], s{41+i//4} offen offset:{(i&3)*1024} sc1")
    for k in range(KC):
        ciss(k)
        if k < KC-1: a(f"s_sleep {cslp}")
    a("L_pb:")
    for k in range(KC):
        for i in range(8): a(f"s_waitcnt vmcnt({8*KC-1-i})\nv_cmpx_eq_u64 vcc, s[58:59], v[{10+32*k+4*i}:{11+32*k+4*i}]")
        a(f"s_cmp_eq_u64 vcc, s[44:45]\ns_mov_b64 exec, s[44:45]\ns_cbranch_scc1 L_cok{k}")
        ciss(k)
    a("s_sub_u32 s35, s35, 1\ns_cbranch_scc0 L_pb\ns_endpgm")
    for k in range(KC):
        a(f"L_cok{k}:\ns_mov_b32 exec_lo, -1")
        for i in range(4): a(f"v_pk_add_f32 v[{104+2*i}:{105+2*i}], v[{8+32*k+8*i}:{9+32*k+8*i}], v[{12+32*k+8*i}:{13+32*k+8*i}]")
        if k < KC-1: a("s_branch L_cs")
    a("L_cs:")
    stamp(4)
    a(f"""v_pk_add_f32 v[104:105], v[104:105], v[106:107]
    v_pk_add_f32 v[108:109], v[108:109], v[110:111]
    v_pk_add_f32 v[104:105], v[104:105], v[108:109]
    s_nop 1
    v_permlane32_swap_b32 v104, v105
    s_nop 0
    v_add_f32 v104, v104, v105
    s_nop 1
    v_add_f32_dpp v104, v104, v104 row_ror:8 row_mask:0xf bank_mask:0xf
    s_nop 1
    v_permlane16_swap_b32 v104, v105
    s_mov_b32 exec_lo, 0xff
    s_mov_b32 exec_hi, 0xff
    v_add_f32 v104, v104, v105
    v_cvt_pk_bf16_f32 v104, v104, v104
    buffer_store_short v104, v4, s[36:39], 0 offen {omod}
    s_mov_b64 exec, 1
    buffer_store_dwordx2 v[6:7], off, s[20:23], s56""")
    stamp(5)
    if st: a("s_waitcnt vmcnt(0)")
    stamp(6)
    stamp_out(range(7), "c", 256)
    a("L_done2:\ns_endpgm")
    hdr = HDR + f"; @launch grid=(256,1,1) block=(512,1,1) lds=2304\n"
    return hdr + a.text() + '.section .rodata,"a"\n' + kdesc(K, 128, 98 if st else 64)
if __name__ == "__main__":
    import ast
    for arg in sys.argv[1:]:
        k, _, v = arg.partition(":")
        open(f"cdna_kernels/{k}.s", "w").write(gen(**eval("dict(" + v + ")")))
```
